```python
import torch

def _softmax(x, axis=-1):
    return torch.softmax(x, dim=axis)
def _gelu(x):
    return torch.nn.functional.gelu(x, approximate="tanh")
def _silu(x):
    return torch.nn.functional.silu(x)
def _sigmoid(x):
    return torch.sigmoid(x)
def _layernorm(x, axis=-1, eps=1e-5):
    m = x.mean(dim=axis, keepdim=True)
    v = x.var(dim=axis, keepdim=True, unbiased=False)
    return (x - m) / torch.sqrt(v + eps)
def _scatter_add(tgt, idx, src, axis=0):
    return tgt.clone().index_add_(axis, idx, src)
def _segment_sum(src, seg, n):
    out = torch.zeros((n,) + src.shape[1:], dtype=src.dtype)
    return out.index_add_(0, seg, src)
def _pad(x, pw):
    flat = tuple(v for pair in reversed(pw) for v in pair)
    return torch.nn.functional.pad(x, flat)

kernel_name = 'concat_heads__gqa_block_cached__sliding_block_cached__decode'

def setup_inputs():

    _w = (lambda a: (lambda t: t.to(torch.bfloat16) if t.is_floating_point() else t)(torch.as_tensor(a)))
    def _A_setup():
        B, Sq, D = 1, 1, 1024
        Hq, Hkv, Sk, Dh = 32, 4, 65536, 128
        assert Hq % Hkv == 0, (Hq, Hkv)
        return {
            "x": _w((lambda *s: torch.randn(*s, dtype=torch.bfloat16) * 0.4)(B, Sq, D)),
            "k_cache": _w((lambda *s: torch.randn(*s, dtype=torch.bfloat16) * 3.2)(B, Hkv, Sk, Dh)),
            "v_cache": _w((lambda *s: torch.randn(*s, dtype=torch.bfloat16) * 0.8)(B, Hkv, Sk, Dh)),
            "wq": _w((lambda *s: torch.randn(*s, dtype=torch.bfloat16) * 3.2)(D, Hq * Dh) * (D ** -0.5)),
            "wo": _w((lambda *s: torch.randn(*s, dtype=torch.bfloat16) * 0.8)(Hq * Dh, D) * ((Hq * Dh) ** -0.5)),
        }
    _A_in = _A_setup()

    def _B_setup():
        B, Sq, D = 1, 1, 1024
        Hq, Hkv, Sk, Dh = 32, 4, 65536, 128
        assert Hq % Hkv == 0, (Hq, Hkv)
        return {
            "x": _w((lambda *s: torch.randn(*s, dtype=torch.bfloat16) * 0.2)(B, Sq, D)),
            "k_cache": _w((lambda *s: torch.randn(*s, dtype=torch.bfloat16) * 3.2)(B, Hkv, Sk, Dh)),
            "v_cache": _w((lambda *s: torch.randn(*s, dtype=torch.bfloat16) * 1.6)(B, Hkv, Sk, Dh)),
            "wq": _w((lambda *s: torch.randn(*s, dtype=torch.bfloat16) * 3.2)(D, Hq * Dh) * (D ** -0.5)),
            "wo": _w((lambda *s: torch.randn(*s, dtype=torch.bfloat16) * 1.6)(Hq * Dh, D) * ((Hq * Dh) ** -0.5)),
        }
    _B_in = _B_setup()

    return {
        "A_x": _A_in["x"],
        "A_k_cache": _A_in["k_cache"],
        "A_v_cache": _A_in["v_cache"],
        "A_wq": _A_in["wq"],
        "A_wo": _A_in["wo"],
        "B_x": _B_in["x"],
        "B_k_cache": _B_in["k_cache"],
        "B_v_cache": _B_in["v_cache"],
        "B_wq": _B_in["wq"],
        "B_wo": _B_in["wo"],
    }

def reference(A_x, A_k_cache, A_v_cache, A_wq, A_wo, B_x, B_k_cache, B_v_cache, B_wq, B_wo):
    def _A_ref(x, k_cache, v_cache, wq, wo):
        B, Sq, D = x.shape
        Hq, Dh = 32, 128
        Hkv = k_cache.shape[1]
        rep = Hq // Hkv
        q = (lambda x, *d: x.permute(*d))((x @ wq).reshape(B, Sq, Hq, Dh), 0, 2, 1, 3)
        k = (lambda x, n, axis: torch.repeat_interleave(x, n, dim=axis))(k_cache, rep, axis=1)
        v = (lambda x, n, axis: torch.repeat_interleave(x, n, dim=axis))(v_cache, rep, axis=1)
        scores = torch.einsum("bhqd,bhkd->bhqk", q, k) * (Dh ** -0.5)
        p = _softmax(scores, axis=-1)
        o = torch.einsum("bhqk,bhkd->bhqd", p, v)
        return (lambda x, *d: x.permute(*d))(o, 0, 2, 1, 3).reshape(B, Sq, Hq * Dh) @ wo

    def _B_ref(x, k_cache, v_cache, wq, wo):
        B, Sq, D = x.shape
        Hq, Dh = 32, 128
        Hkv, Sk = k_cache.shape[1], k_cache.shape[2]
        W = min(4096, max(256, Sk // 4))
        rep = Hq // Hkv
        q = (lambda x, *d: x.permute(*d))((x @ wq).reshape(B, Sq, Hq, Dh), 0, 2, 1, 3)
        k = (lambda x, n, axis: torch.repeat_interleave(x, n, dim=axis))(k_cache[:, :, Sk - W:, :], rep, axis=1)
        v = (lambda x, n, axis: torch.repeat_interleave(x, n, dim=axis))(v_cache[:, :, Sk - W:, :], rep, axis=1)
        scores = torch.einsum("bhqd,bhkd->bhqk", q, k) * (Dh ** -0.5)
        p = _softmax(scores, axis=-1)
        o = torch.einsum("bhqk,bhkd->bhqd", p, v)
        return (lambda x, *d: x.permute(*d))(o, 0, 2, 1, 3).reshape(B, Sq, Hq * Dh) @ wo

    a = _A_ref(A_x, A_k_cache, A_v_cache, A_wq, A_wo)
    b = _B_ref(B_x, B_k_cache, B_v_cache, B_wq, B_wo)
    return torch.concatenate([a, b], axis=-1)
```

```python
import re

REG_RE = re.compile(r'^(-?\|?)?([vsa])(\d+|\[(\d+):(\d+)\])\|?$')

def regs_of(tok):
    tok = tok.strip()
    if tok.startswith('abs(') and tok.endswith(')'):
        tok = tok[4:-1]
    if tok.startswith('-abs(') and tok.endswith(')'):
        tok = tok[5:-1]
    if tok in ('vcc',):
        return [('s', 106), ('s', 107)]
    if tok == 'vcc_lo': return [('s', 106)]
    if tok == 'vcc_hi': return [('s', 107)]
    if tok == 'exec': return [('s', 126), ('s', 127)]
    if tok == 'm0': return [('s', 124)]
    m = REG_RE.match(tok)
    if not m:
        return []
    c = m.group(2)
    if m.group(4) is not None:
        return [(c, i) for i in range(int(m.group(4)), int(m.group(5)) + 1)]
    return [(c, int(m.group(3)))]

def split_ops(s):
    out, depth, cur = [], 0, ''
    for ch in s:
        if ch in '[(': depth += 1
        if ch in '])': depth -= 1
        if ch == ',' and depth == 0:
            out.append(cur.strip()); cur = ''
        else:
            cur += ch
    if cur.strip():
        out.append(cur.strip())
    mods = []
    if out:
        parts = out[-1].split()
        out[-1] = parts[0]
        mods = parts[1:]
    return out, mods

TRANS = ('v_exp_f32', 'v_log_f32', 'v_rcp_f32', 'v_rsq_f32', 'v_sqrt_f32', 'v_sin_f32', 'v_cos_f32')
MFMA_PASS = {'v_mfma_f32_16x16x32_bf16': 4, 'v_mfma_f32_16x16x16_bf16': 4, 'v_mfma_f32_32x32x16_bf16': 8}

class Ins:
    def __init__(self, text):
        self.text = text
        t = text.split(';')[0].strip()
        self.label = None
        self.mn = None
        self.defs, self.uses = [], []
        self.kind = 'other'
        self.ws = 1
        self.srcC = []
        self.srcAB = []
        self.target = None
        self.dpp = False
        if not t or t.startswith('.'):
            self.kind = 'none'; self.ws = 0; return
        if t.endswith(':'):
            self.kind = 'label'; self.label = t[:-1]; self.ws = 0; return
        sp = t.split(None, 1)
        mn = sp[0]; self.mn = mn
        ops, mods = split_ops(sp[1]) if len(sp) > 1 else ([], [])
        self.ops, self.mods = ops, mods
        R = [regs_of(o) for o in ops]
        flat = lambda L: [x for l in L for x in l]
        if mn == 's_nop':
            self.kind = 'nop'; self.ws = int(ops[0], 0) + 1; return
        if mn.startswith('s_cbranch') or mn == 's_branch':
            self.kind = 'branch'; self.target = ops[0]; return
        if mn.startswith('v_mfma'):
            self.kind = 'mfma'; self.passes = MFMA_PASS[mn]
            self.defs = R[0]; self.srcAB = R[1] + R[2]; self.srcC = R[3]; self.uses = self.srcAB + self.srcC
            return
        if mn.startswith('v_'):
            self.kind = 'valu'
            base = mn.replace('_e32', '').replace('_e64', '').replace('_dpp', '')
            self.base = base
            self.dpp = mn.endswith('_dpp') or any(m.startswith(('row_', 'quad_perm', 'wave_')) for m in mods)
            if base.startswith('v_permlane') and 'swap' in base:
                self.defs = R[0] + R[1]; self.uses = R[0] + R[1]; self.permlane = True
            elif base.startswith('v_cmpx'):
                self.defs = R[0] + regs_of('exec'); self.uses = flat(R[1:])
            elif base in ('v_add_co_u32', 'v_sub_co_u32', 'v_addc_co_u32', 'v_subb_co_u32'):
                self.defs = R[0] + R[1]; self.uses = flat(R[2:])
            else:
                self.defs = R[0]; self.uses = flat(R[1:])
                if base in ('v_fmac_f32', 'v_dot2c_f32_bf16', 'v_pk_fmac_f16') or self.dpp:
                    self.uses = self.uses + R[0]
                if base == 'v_cndmask_b32' and len(ops) == 3:
                    self.uses = self.uses + regs_of('vcc')
            self.trans = base in TRANS
            return
        if mn.startswith(('buffer_', 'global_', 'flat_')):
            self.kind = 'vmem'
            if 'load' in mn and 'lds' not in mods:
                self.defs = R[0]; self.uses = flat(R[1:])
            elif 'atomic' in mn:
                self.uses = flat(R)
                if 'sc0' in mods: self.defs = R[0]
            else:
                self.uses = flat(R)
            self.wide_store = ('store' in mn and ('x4' in mn or 'x3' in mn))
            self.store_data = R[0] if (mn.startswith('buffer_store')) else (R[1] if 'store' in mn and len(R) > 1 else [])
            return
        if mn.startswith('ds_'):
            self.kind = 'ds'
            if mn.startswith(('ds_read', 'ds_bpermute', 'ds_permute', 'ds_swizzle')) or '_rtn' in mn:
                self.defs = R[0]; self.uses = flat(R[1:])
            else:
                self.uses = flat(R)
            return
        if mn.startswith('s_'):
            self.kind = 'salu'
            if mn.startswith(('s_cmp', 's_waitcnt', 's_barrier', 's_sleep', 's_setprio', 's_endpgm', 's_bitcmp')):
                self.uses = flat(R)
            else:
                self.defs = R[0] if R else []
                self.uses = flat(R[1:])
                if 'saveexec' in mn: self.defs = self.defs + regs_of('exec')
            return
        raise ValueError("unknown instr " + t)

def need(prev, cur):
    n = 0
    pd = set(prev.defs)
    if prev.kind == 'valu':
        vd = {r for r in pd if r[0] in 'va'}
        sd = {r for r in pd if r[0] == 's'}
        if cur.kind == 'valu':
            cu = set(cur.uses)
            if cur.base in ('v_readfirstlane_b32', 'v_readlane_b32') and vd & cu: n = max(n, 1)
            if cur.dpp and vd & cu: n = max(n, 2)
            if getattr(cur, 'permlane', False) and vd & cu: n = max(n, 2)
            if prev.trans and not cur.trans and vd & cu: n = max(n, 1)
            if sd & cu:
                n = max(n, 4 if cur.base in ('v_readlane_b32', 'v_writelane_b32') else 2)
            if ('s', 126) in sd:
                if cur.dpp: n = max(n, 5)
                if cur.base in ('v_readfirstlane_b32', 'v_readlane_b32', 'v_writelane_b32') or getattr(cur, 'permlane', False): n = max(n, 4)
            if any(m.startswith(('dst_sel', 'op_sel')) for m in prev.mods) and vd & (cu | set(cur.defs)): n = max(n, 1)
        if cur.kind == 'mfma':
            if vd & set(cur.uses): n = max(n, 2)
            if ('s', 126) in sd: n = max(n, 4)
        if cur.kind == 'vmem' and sd & set(cur.uses): n = max(n, 5)
        if cur.kind == 'salu' and sd & set(cur.uses): n = max(n, 1)
    if prev.kind == 'mfma':
        big = {4: 8, 8: 12}[prev.passes]
        ovl = {4: 6, 8: 10}[prev.passes]
        war = {4: 3, 8: 7}[prev.passes]
        if cur.kind == 'mfma':
            if pd & set(cur.srcAB): n = max(n, big)
            if pd & set(cur.srcC):
                if cur.srcC == prev.defs and cur.passes == prev.passes: pass
                else: n = max(n, ovl)
            elif pd & set(cur.defs):
                n = max(n, big)
        elif cur.kind in ('valu', 'vmem', 'ds'):
            if pd & (set(cur.uses) | set(cur.defs)): n = max(n, big)
            if cur.kind == 'valu' and set(prev.srcC) & set(cur.defs): n = max(n, war)
    if prev.kind == 'vmem' and getattr(prev, 'wide_store', False):
        if set(prev.store_data) & set(cur.defs):
            n = max(n, 2 if cur.kind == 'valu' else 1)
    if prev.kind == 'salu' and ('s', 124) in pd and cur.kind == 'vmem' and 'lds' in getattr(cur, 'mods', []):
        n = max(n, 1)
    return n

class Asm:
    def __init__(self):
        self.L = []
    def __call__(self, text):
        for line in text.split('\n'):
            if line.strip():
                self.L.append(line.rstrip())
    def label(self, name):
        self.L.append(name + ':')
    def finalize(self):
        ins = [Ins(t) for t in self.L]
        out = []
        WIN = 20
        for i in ins:
            if i.kind in ('none', 'label'):
                out.append(i); continue
            dist = 0; req = 0
            for p in reversed(out):
                if p.kind in ('none', 'label'): continue
                if p.kind == 'branch' and p.mn == 's_branch': break
                if p.mn == 's_endpgm': break
                r = need(p, i)
                if r - dist > req: req = r - dist
                dist += p.ws
                if dist >= WIN: break
            while req > 0:
                k = min(req, 16)
                out.append(Ins(f"  s_nop {k-1}   ; hz"))
                req -= k
            out.append(i)
        labels = {x.label: k for k, x in enumerate(out) if x.kind == 'label'}
        for k, b in enumerate(out):
            if b.kind != 'branch': continue
            if b.target not in labels:
                raise ValueError("missing label " + b.target)
            prods = []; dist = b.ws
            for p in reversed(out[:k]):
                if p.kind in ('none', 'label'): continue
                if (p.kind == 'branch' and p.mn == 's_branch') or p.mn == 's_endpgm': break
                prods.append((p, dist)); dist += p.ws
                if dist >= WIN: break
            d2 = 0
            for c in out[labels[b.target]:]:
                if c.kind in ('none', 'label'): continue
                for p, dp in prods:
                    r = need(p, c)
                    if r > dp + d2:
                        raise ValueError(f"hazard across branch {b.text.strip()}: {p.text.strip()} -> {c.text.strip()} needs {r} has {dp+d2}")
                d2 += c.ws
                if d2 >= WIN or (c.kind == 'branch' and c.mn == 's_branch') or c.mn == 's_endpgm': break
        return "\n".join(x.text for x in out) + "\n"
```

```python
import sys
sys.path.insert(0, 'gen')
from asmlib import Asm

NAME = "concat_heads__gqa_block_cached__sliding_block_cached__decode"
HEADER = open('cdna_kernels/%s.s.ref' % NAME).read().split('; Override launch')[0]

WS_EPOCH = 0
QBOX = 0x1000
LSEB = 0x10000
H1 = 0x100000
H2 = 0x300000
WS_SIZE = 0x500000
STAMPS = 0x600000
L_CNT = 0x0
L_OZ = 0x100
L_QP = 0x900
L_QF = 0x1100
L_ML = 0x2100
L_SP = 0x2400
SPS = 4224
LDS_SIZE = L_SP + 6 * SPS
TAGM = 0x3FF
LOG2E = 0x3FB8AA3B
SCALE = 0x3DB504F3
SPIN_MAX = 40000

def gen(diag=False):
    A = Asm()
    A(HEADER.rstrip())
    A(f"; @launch grid=(256,1,1) block=(512,1,1) lds={LDS_SIZE}")
    A('.amdgcn_target "amdgcn-amd-amdhsa--gfx950"')
    A(f".text\n.globl {NAME}_kernel\n.p2align 8\n.type {NAME}_kernel,@function\n{NAME}_kernel:")

    def srd(d, lo, hi, size):
        A(f"  s_mov_b32 s{d}, s{lo}\n  s_mov_b32 s{d+1}, s{hi}\n  s_mov_b32 s{d+2}, {size}\n  s_mov_b32 s{d+3}, 0x00020000")

    nst = [0]
    def stamp(idx):
        if not diag: return
        A("  s_memrealtime s[98:99]")
        A("  s_waitcnt lgkmcnt(0)")
        A("  v_mov_b32 v254, s98")
        A(f"  buffer_store_dword v254, v255, s[92:95], 0 offen offset:{idx*4}")

    A("  s_cmp_ge_u32 s2, 256")
    A("  s_cbranch_scc1 L_END")
    A("  s_load_dwordx16 s[16:31], s[0:1], 0")
    A("  s_load_dwordx8 s[32:39], s[0:1], 64")
    A("  s_load_dwordx2 s[40:41], s[0:1], 96")
    A("  v_lshrrev_b32 v2, 6, v0")
    A("  v_and_b32 v1, 63, v0")
    A("  v_readfirstlane_b32 s3, v2")
    A("  s_mov_b32 s4, 0x05040100")
    A("  s_mov_b32 s5, 0x07060302")
    A("  s_lshr_b32 s6, s2, 6")
    A("  s_and_b32 s7, s2, 63")
    if diag:
        A("  s_lshl_b32 s96, s2, 3")
        A("  s_add_u32 s96, s96, s3")
        A("  s_lshl_b32 s96, s96, 6")
        A(f"  s_add_u32 s96, s96, {STAMPS}")
        A("  v_mov_b32 v255, s96")
        A("  s_waitcnt lgkmcnt(0)")
        srd(92, 40, 41, STAMPS + 256 * 8 * 64)
        stamp(0)
    A("  s_cmp_ge_u32 s3, 4")
    A("  s_cbranch_scc1 L_S")

    A("  s_lshr_b32 s8, s2, 7")
    A("  s_and_b32 s9, s2, 0x70")
    A("  s_and_b32 s10, s2, 7")
    A("  s_lshl_b32 s10, s10, 1")
    A("  s_or_b32 s9, s9, s10")
    A("  s_bfe_u32 s10, s2, 0x10003")
    A("  s_or_b32 s9, s9, s10")
    A("  v_lshrrev_b32 v3, 2, v1")
    A("  v_and_b32 v4, 3, v1")
    A("  v_lshlrev_b32 v5, 17, v3")
    A("  v_lshl_add_u32 v5, v4, 4, v5")
    A("  v_lshlrev_b32 v6, 5, v3")
    A("  v_mov_b32 v7, 0")
    A("  s_lshl_b32 s10, s3, 21")
    A("  s_lshl_b32 s11, s9, 6")
    A("  s_add_u32 s10, s10, s11")
    A("  s_lshl_b32 s11, s3, 9")
    A("  s_cmp_eq_u32 s8, 0")
    A("  s_waitcnt lgkmcnt(0)")
    A("  s_cselect_b32 s44, s22, s32")
    A("  s_cselect_b32 s45, s23, s33")
    A(f"  s_mov_b32 s46, {8<<20}\n  s_mov_b32 s47, 0x00020000")
    A("  s_cselect_b32 s48, s16, s26")
    A("  s_cselect_b32 s49, s17, s27")
    A(f"  s_mov_b32 s50, 2048\n  s_mov_b32 s51, 0x00020000")
    srd(52, 40, 41, WS_SIZE)
    XR = 16
    WR = 64
    ACC = 24
    A(f"  buffer_load_dwordx4 v[{XR}:{XR+3}], v6, s[48:51], s11 offen")
    A(f"  buffer_load_dwordx4 v[{XR+4}:{XR+7}], v6, s[48:51], s11 offen offset:16")
    for t in range(16):
        A(f"  buffer_load_dwordx4 v[{WR+4*t}:{WR+4*t+3}], v5, s[44:47], s10 offen nt")
        if t < 15: A("  s_add_u32 s10, s10, 8192")
    A("  buffer_load_dword v8, v7, s[52:55], 0 offen sc1")
    A("  s_barrier")
    srd(60, 36, 37, 4096)
    srd(64, 38, 39, 256)
    for i in range(8): A(f"  v_mov_b32 v{ACC+i}, 0")
    for u in range(8):
        A(f"  s_waitcnt vmcnt({15-2*u})")
        for q in range(4):
            A(f"  v_perm_b32 v{32+2*q}, v{WR+8*u+4+q}, v{WR+8*u+q}, s4")
            A(f"  v_perm_b32 v{33+2*q}, v{WR+8*u+4+q}, v{WR+8*u+q}, s5")
        for q in range(8):
            A(f"  v_dot2c_f32_bf16 v{ACC+q}, v{32+q}, v{XR+u}")
    A("  v_lshrrev_b32 v9, 4, v1")
    A("  s_lshl_b32 s10, s3, 2")
    A("  v_add_u32 v9, s10, v9")
    A("  v_lshlrev_b32 v9, 7, v9")
    A("  v_lshl_add_u32 v9, v4, 5, v9")
    for rot in (4, 8):
        for i in range(8):
            A(f"  v_add_f32_dpp v{ACC+i}, v{ACC+i}, v{ACC+i} row_ror:{rot} row_mask:0xf bank_mask:0xf")
    A(f"  ds_write_b128 v9, v[{ACC}:{ACC+3}] offset:{L_QP}")
    A(f"  ds_write_b128 v9, v[{ACC+4}:{ACC+7}] offset:{L_QP+16}")
    A("  s_waitcnt vmcnt(0) lgkmcnt(0)")
    A("  s_barrier")
    A("  v_add_u32 v8, 1, v8")
    A("  v_and_b32 v10, 0xffff, v8")
    A(f"  v_and_b32 v11, {TAGM}, v8")
    A(f"  s_mov_b32 s12, {TAGM}")
    A(f"  s_mov_b32 s13, {(~TAGM) & 0xffffffff}")
    A("  s_mov_b32 s14, 0xffff0000")
    A("  v_lshlrev_b32 v12, 4, v1")
    stamp(1)
    A("  s_cmp_lg_u32 s3, 0")
    A("  s_cbranch_scc1 L_T_QPOLL")
    A("  v_and_b32 v13, 7, v1")
    A("  v_lshrrev_b32 v14, 3, v1")
    A("  v_lshlrev_b32 v14, 8, v14")
    A("  v_lshl_add_u32 v14, v13, 4, v14")
    A(f"  ds_read_b128 v[32:35], v14 offset:{L_QP}")
    A(f"  ds_read_b128 v[36:39], v14 offset:{L_QP+128}")
    A("  s_lshl_b32 s10, s8, 14")
    A("  s_lshl_b32 s11, s9, 7")
    A("  s_add_u32 s10, s10, s11")
    A(f"  s_add_u32 s10, s10, {QBOX}")
    A("  s_waitcnt lgkmcnt(0)")
    for i in range(4): A(f"  v_add_f32 v{32+i}, v{32+i}, v{36+i}")
    for i in range(4): A(f"  v_add_f32_dpp v{32+i}, v{32+i}, v{32+i} row_ror:8 row_mask:0xf bank_mask:0xf")
    for sw in ("v_permlane16_swap_b32", "v_permlane32_swap_b32"):
        for i in range(4): A(f"  v_mov_b32 v{36+i}, v{32+i}")
        for i in range(4): A(f"  {sw} v{32+i}, v{36+i}")
        for i in range(4): A(f"  v_add_f32 v{32+i}, v{32+i}, v{36+i}")
    A("  v_cvt_pk_bf16_f32 v36, v32, v33")
    A("  v_cvt_pk_bf16_f32 v37, v34, v35")
    A("  v_lshl_or_b32 v32, v36, 16, v10")
    A("  v_and_or_b32 v33, v36, s14, v10")
    A("  v_lshl_or_b32 v34, v37, 16, v10")
    A("  v_and_or_b32 v35, v37, s14, v10")
    A("  s_mov_b64 exec, 0xff")
    A("  buffer_store_dwordx4 v[32:35], v12, s[52:55], s10 offen sc1")
    A("  s_mov_b64 exec, -1")
    stamp(2)
    A.label("L_T_QPOLL")
    A("  s_lshl_b32 s10, s6, 12")
    A("  s_lshl_b32 s11, s3, 10")
    A("  s_add_u32 s10, s10, s11")
    A(f"  s_add_u32 s10, s10, {QBOX}")
    A("  s_add_u32 s11, s10, 16384")
    A("  s_mov_b32 s15, 0")
    A.label("L_T_QP1")
    A("  buffer_load_dwordx4 v[40:43], v12, s[52:55], s10 offen sc1")
    A("  buffer_load_dwordx4 v[44:47], v12, s[52:55], s11 offen sc1")
    A("  s_add_u32 s15, s15, 1")
    A("  s_waitcnt vmcnt(0)")
    A("  v_bitop3_b32 v48, v40, v41, v10 bitop3:0x7e")
    A("  v_bitop3_b32 v49, v42, v43, v10 bitop3:0x7e")
    A("  v_bitop3_b32 v50, v44, v45, v10 bitop3:0x7e")
    A("  v_bitop3_b32 v51, v46, v47, v10 bitop3:0x7e")
    A("  v_or3_b32 v48, v48, v49, v50")
    A("  v_or_b32 v48, v48, v51")
    A("  v_and_b32 v48, 0xffff, v48")
    A("  v_cmp_ne_u32 vcc, 0, v48")
    A("  s_cbranch_vccz L_T_QP2")
    A("  s_sleep 2")
    A(f"  s_cmp_lt_u32 s15, {SPIN_MAX}")
    A("  s_cbranch_scc1 L_T_QP1")
    A("  v_mov_b32 v48, 1")
    A("  buffer_store_dword v48, v7, s[64:67], 0 offen")
    A.label("L_T_QP2")
    A("  v_perm_b32 v48, v41, v40, s5")
    A("  v_perm_b32 v49, v43, v42, s5")
    A("  v_perm_b32 v50, v45, v44, s5")
    A("  v_perm_b32 v51, v47, v46, s5")
    A("  s_lshl_b32 s10, s3, 9")
    A("  v_lshl_add_u32 v13, v1, 3, s10")
    A(f"  ds_write_b64 v13, v[48:49] offset:{L_QF}")
    A(f"  ds_write_b64 v13, v[50:51] offset:{L_QF+2048}")
    A("  s_waitcnt lgkmcnt(0)")
    A("  s_barrier")
    stamp(3)

    A("  v_lshrrev_b32 v2, 4, v1")
    A("  v_and_b32 v3, 15, v1")
    A("  v_and_b32 v4, 1, v2")
    A("  v_lshrrev_b32 v5, 1, v2")
    A("  v_lshlrev_b32 v14, 12, v4")
    A("  v_lshl_add_u32 v14, v5, 8, v14")
    A("  v_lshl_add_u32 v14, v3, 4, v14")
    A("  v_lshlrev_b32 v15, 3, v5")
    A("  v_sub_u32 v15, v3, v15")
    A("  v_add_u32 v15, 8, v15")
    A("  v_lshlrev_b32 v15, 5, v15")
    A("  v_lshl_add_u32 v15, v4, 4, v15")
    A("  v_lshrrev_b32 v6, 2, v0")
    A("  v_lshlrev_b32 v16, 12, v6")
    A("  v_and_b32 v6, 3, v0")
    A("  v_lshl_add_u32 v16, v6, 4, v16")
    A("  v_lshlrev_b32 v22, 3, v6")
    A("  v_lshrrev_b32 v6, 5, v0")
    A("  v_add_u32 v17, v0, v6")
    A("  v_lshlrev_b32 v17, 4, v17")
    A("  v_lshlrev_b32 v18, 3, v6")
    A("  v_lshlrev_b32 v21, 9, v6")
    A("  v_lshlrev_b32 v19, 5, v5")
    A("  v_lshl_add_u32 v19, v3, 1, v19")
    A("  v_add_u32 v19, v19, v4")
    A("  s_lshl_b32 s10, s3, 6")
    A("  v_add_u32 v19, s10, v19")
    A("  v_lshlrev_b32 v19, 12, v19")
    A("  v_lshrrev_b32 v20, 2, v1")
    A("  v_lshlrev_b32 v20, 5, v20")
    A("  s_lshr_b32 s68, s2, 1")
    A("  s_lshl_b32 s68, s68, 5")
    A("  s_and_b32 s10, s2, 1")
    A("  s_lshl_b32 s10, s10, 2")
    A("  s_add_u32 s68, s68, s10")
    A("  s_lshl_b32 s68, s68, 11")
    A("  s_lshl_b32 s10, s3, 9")
    A("  s_add_u32 s68, s68, s10")
    A("  s_mov_b32 s70, 1")
    A(f"  s_mov_b32 s58, {8<<20}\n  s_mov_b32 s59, 0x00020000")
    A(f"  s_mov_b32 s90, {LOG2E}")

    A.label("L_T_PHASE")
    A("  s_cmp_eq_u32 s70, 0")
    A("  s_cselect_b32 s56, s24, s34")
    A("  s_cselect_b32 s57, s25, s35")
    A(f"  s_cselect_b32 s71, 0, {4*SPS}")
    A(f"  s_cselect_b32 s72, {2*SPS}, 0")
    A(f"  s_cselect_b32 s73, 0, {4*64}")
    A("  s_cselect_b32 s74, 128, 0")
    A("  s_cselect_b32 s75, 4, 2")
    WO = 64; WT = 96
    A("  s_mov_b32 s10, s68")
    for r in range(4):
        A(f"  buffer_load_dwordx4 v[{WO+4*r}:{WO+4*r+3}], v14, s[56:59], s10 offen nt")
        A(f"  buffer_load_dwordx4 v[{WO+16+4*r}:{WO+16+4*r+3}], v14, s[56:59], s10 offen offset:2048 nt")
        if r < 3: A("  s_add_u32 s10, s10, 16384")
    A("  s_lshl_b32 s76, s70, 20")
    A("  s_lshl_b32 s77, s70, 14")
    A("  s_lshl_b32 s78, s70, 2")
    A("  v_mov_b32 v23, s78")
    A("  v_add_u32 v24, s71, v17")
    A("  v_add_u32 v25, s72, v24")
    A("  v_add_u32 v26, s73, v18")
    A("  v_add_u32 v27, s74, v26")
    A("  s_lshl_b32 s10, s70, 10")
    A(f"  s_add_u32 s10, s10, {L_OZ}")
    A("  v_add_u32 v28, s10, v15")
    A("  s_add_u32 s10, s10, 480")
    A("  v_add_u32 v29, s10, v22")
    A("  s_lshl_b32 s79, s6, 18")
    A("  s_lshl_b32 s10, s7, 6")
    A("  s_add_u32 s79, s79, s10")
    A("  s_add_u32 s79, s79, s76")
    A(f"  s_add_u32 s79, s79, {H1}")
    A("  s_lshl_b32 s80, s6, 12")
    A("  s_and_b32 s10, s7, 15")
    A("  s_lshl_b32 s10, s10, 5")
    A("  s_add_u32 s80, s80, s10")
    A("  s_lshr_b32 s10, s7, 4")
    A("  s_lshl_b32 s10, s10, 3")
    A("  s_add_u32 s80, s80, s10")
    A("  s_add_u32 s80, s80, s77")
    A(f"  s_add_u32 s80, s80, {LSEB}")
    A("  s_lshl_b32 s81, s2, 12")
    A("  s_add_u32 s81, s81, s76")
    A(f"  s_add_u32 s82, s81, {H2}")
    A(f"  s_add_u32 s81, s81, {H1}")
    A("  s_lshr_b32 s83, s2, 3")
    A("  s_lshl_b32 s83, s83, 9")
    A("  s_add_u32 s83, s83, s77")
    A(f"  s_add_u32 s83, s83, {LSEB}")
    A("  s_lshl_b32 s84, s2, 4")
    A("  s_add_u32 s84, s84, s76")
    A(f"  s_add_u32 s84, s84, {H2}")
    A("  s_lshl_b32 s85, s70, 11")
    A("  s_lshl_b32 s10, s2, 3")
    A("  s_add_u32 s85, s85, s10")
    A("  s_waitcnt vmcnt(0)")
    for i in range(8):
        for p in range(4):
            A(f"  v_perm_b32 v{WT+4*i+p}, v{WO+4*(2*p+1)+(i>>1)}, v{WO+4*(2*p)+(i>>1)}, s{4+(i&1)}")
    A("  s_mov_b32 s15, 0")
    A.label("L_T_W1")
    A(f"  ds_read_b32 v30, v23 offset:{L_CNT}")
    A("  s_add_u32 s15, s15, 1")
    A("  s_waitcnt lgkmcnt(0)")
    A("  v_readfirstlane_b32 s10, v30")
    A("  s_cmp_ge_u32 s10, s75")
    A("  s_cbranch_scc1 L_T_W1D")
    A("  s_sleep 1")
    A(f"  s_cmp_lt_u32 s15, {SPIN_MAX*8}")
    A("  s_cbranch_scc1 L_T_W1")
    A("  v_mov_b32 v48, 2")
    A("  buffer_store_dword v48, v7, s[64:67], 0 offen offset:4")
    A.label("L_T_W1D")
    if diag:
        A("  s_cmp_eq_u32 s70, 0")
        A("  s_cbranch_scc0 L_DG1")
        stamp(4)
        A.label("L_DG1")
    A(f"  ds_read_b64 v[32:33], v26 offset:{L_ML}")
    A(f"  ds_read_b64 v[34:35], v26 offset:{L_ML+64}")
    A(f"  ds_read_b64 v[36:37], v27 offset:{L_ML}")
    A(f"  ds_read_b64 v[38:39], v27 offset:{L_ML+64}")
    A(f"  ds_read_b128 v[40:43], v24 offset:{L_SP}")
    A(f"  ds_read_b128 v[44:47], v24 offset:{L_SP+SPS}")
    A(f"  ds_read_b128 v[48:51], v25 offset:{L_SP}")
    A(f"  ds_read_b128 v[52:55], v25 offset:{L_SP+SPS}")
    A("  s_waitcnt lgkmcnt(4)")
    A("  v_max3_f32 v56, v32, v34, v36")
    A("  v_max_f32 v56, v56, v38")
    for k in range(4): A(f"  v_sub_f32 v{32+2*k}, v{32+2*k}, v56")
    for k in range(4): A(f"  v_exp_f32 v{32+2*k}, v{32+2*k}")
    A("  v_mul_f32 v57, v32, v33")
    for k in range(1, 4): A(f"  v_fmac_f32 v57, v{32+2*k}, v{33+2*k}")
    A("  v_rcp_f32 v58, v57")
    A("  v_log_f32 v59, v57")
    for k in range(4): A(f"  v_mul_f32 v{32+2*k}, v{32+2*k}, v58")
    A("  v_add_f32 v60, v56, v59")
    A("  v_mov_b32 v61, v8")
    A("  s_waitcnt lgkmcnt(0)")
    for j in range(4): A(f"  v_mul_f32 v{40+j}, v{40+j}, v32")
    for k in range(1, 4):
        for j in range(4): A(f"  v_fmac_f32 v{40+j}, v{40+4*k+j}, v{32+2*k}")
    for j in range(4): A(f"  v_bfi_b32 v{40+j}, s12, v11, v{40+j}")
    A("  buffer_store_dwordx4 v[40:43], v16, s[52:55], s79 offen sc1")
    A("  s_mov_b32 s10, 1\n  s_mov_b32 s11, 1")
    A("  s_mov_b64 exec, s[10:11]")
    A("  buffer_store_dwordx2 v[60:61], v21, s[52:55], s80 offen sc1")
    A("  s_mov_b64 exec, -1")
    A("  s_cmp_lg_u32 s3, 0")
    A("  s_cbranch_scc1 L_T_W2")
    A("  s_mov_b32 s15, 0")
    A.label("L_T_G1")
    A("  buffer_load_dwordx4 v[48:51], v20, s[52:55], s83 offen sc1")
    A("  buffer_load_dwordx4 v[52:55], v20, s[52:55], s83 offen offset:16 sc1")
    for t in range(4):
        A(f"  buffer_load_dwordx4 v[{128+4*t}:{131+4*t}], v12, s[52:55], s81 offen offset:{1024*t} sc1")
    A("  s_add_u32 s15, s15, 1")
    A("  s_waitcnt vmcnt(0)")
    for t in range(4):
        A(f"  v_bitop3_b32 v{32+2*t}, v{128+4*t}, v{129+4*t}, v11 bitop3:0x7e")
        A(f"  v_bitop3_b32 v{33+2*t}, v{130+4*t}, v{131+4*t}, v11 bitop3:0x7e")
    A("  v_bitop3_b32 v56, v49, v51, v8 bitop3:0x7e")
    A("  v_bitop3_b32 v57, v53, v55, v8 bitop3:0x7e")
    A("  v_or3_b32 v32, v32, v33, v34")
    A("  v_or3_b32 v35, v35, v36, v37")
    A("  v_or3_b32 v32, v32, v38, v39")
    A("  v_or_b32 v32, v32, v35")
    A("  v_and_b32 v32, s12, v32")
    A("  v_or3_b32 v32, v32, v56, v57")
    A("  v_cmp_ne_u32 vcc, 0, v32")
    A("  s_cbranch_vccz L_T_G1D")
    A("  s_sleep 1")
    A(f"  s_cmp_lt_u32 s15, {SPIN_MAX}")
    A("  s_cbranch_scc1 L_T_G1")
    A("  v_mov_b32 v32, 3")
    A("  buffer_store_dword v32, v7, s[64:67], 0 offen offset:8")
    A.label("L_T_G1D")
    if diag:
        A("  s_cmp_eq_u32 s70, 0")
        A("  s_cbranch_scc0 L_DG2")
        stamp(5)
        A.label("L_DG2")
    A("  v_max3_f32 v56, v48, v50, v52")
    A("  v_max_f32 v56, v56, v54")
    for k in range(16): A(f"  v_and_b32 v{128+k}, s13, v{128+k}")
    A("  v_max_f32_dpp v56, v56, v56 row_ror:4 row_mask:0xf bank_mask:0xf")
    A("  v_max_f32_dpp v56, v56, v56 row_ror:8 row_mask:0xf bank_mask:0xf")
    for sw in ("v_permlane16_swap_b32", "v_permlane32_swap_b32"):
        A("  v_mov_b32 v57, v56")
        A(f"  {sw} v56, v57")
        A("  v_max_f32 v56, v56, v57")
    for t in range(4): A(f"  v_sub_f32 v{48+2*t}, v{48+2*t}, v56")
    for t in range(4): A(f"  v_exp_f32 v{48+2*t}, v{48+2*t}")
    A("  v_add_f32 v36, v48, v50")
    for j in range(4): A(f"  v_mul_f32 v{32+j}, v{128+j}, v48")
    A("  v_add_f32 v36, v36, v52")
    for j in range(4): A(f"  v_fmac_f32 v{32+j}, v{132+j}, v50")
    A("  v_add_f32 v36, v36, v54")
    for j in range(4): A(f"  v_fmac_f32 v{32+j}, v{136+j}, v52")
    for j in range(4): A(f"  v_fmac_f32 v{32+j}, v{140+j}, v54")
    for rot in (4, 8):
        for j in (4, 0, 1, 2, 3): A(f"  v_add_f32_dpp v{32+j}, v{32+j}, v{32+j} row_ror:{rot} row_mask:0xf bank_mask:0xf")
    for sw in ("v_permlane16_swap_b32", "v_permlane32_swap_b32"):
        for j in (4, 0, 1, 2, 3): A(f"  v_mov_b32 v{40+j}, v{32+j}")
        for j in (4, 0, 1, 2, 3): A(f"  {sw} v{32+j}, v{40+j}")
        for j in (4, 0, 1, 2, 3): A(f"  v_add_f32 v{32+j}, v{32+j}, v{40+j}")
    A("  v_rcp_f32 v36, v36")
    for j in range(4): A(f"  v_mul_f32 v{32+j}, v{32+j}, v36")
    A("  v_cvt_pk_bf16_f32 v40, v32, v33")
    A("  v_cvt_pk_bf16_f32 v41, v34, v35")
    A("  v_mov_b32 v42, 1")
    A("  ds_write_b64 v29, v[40:41]")
    A("  s_waitcnt lgkmcnt(0)")
    A("  ds_write_b32 v23, v42 offset:8")
    A.label("L_T_W2")
    A("  s_mov_b32 s15, 0")
    A.label("L_T_W2L")
    A("  ds_read_b32 v30, v23 offset:8")
    A("  s_add_u32 s15, s15, 1")
    A("  s_waitcnt lgkmcnt(0)")
    A("  v_readfirstlane_b32 s10, v30")
    A("  s_cmp_lg_u32 s10, 0")
    A("  s_cbranch_scc1 L_T_W2D")
    A("  s_sleep 1")
    A(f"  s_cmp_lt_u32 s15, {SPIN_MAX*16}")
    A("  s_cbranch_scc1 L_T_W2L")
    A.label("L_T_W2D")
    for i in range(8):
        A(f"  ds_read_b128 v[{144+4*i}:{147+4*i}], v28 offset:{(7-i)*32}")
    for i in range(8):
        A(f"  s_waitcnt lgkmcnt({7-i})")
        c = "0" if i == 0 else "v[32:35]"
        A(f"  v_mfma_f32_16x16x32_bf16 v[32:35], v[{144+4*i}:{147+4*i}], v[{WT+4*i}:{WT+4*i+3}], {c}")
    for j in range(4): A(f"  v_bfi_b32 v{32+j}, s12, v11, v{32+j}")
    A("  buffer_store_dwordx4 v[32:35], v19, s[52:55], s84 offen sc1")
    A("  s_cmp_lg_u32 s3, 0")
    A("  s_cbranch_scc1 L_T_NEXT")
    if diag:
        A("  s_cmp_eq_u32 s70, 0")
        A("  s_cbranch_scc0 L_DG3")
        stamp(6)
        A.label("L_DG3")
    A("  s_mov_b32 s15, 0")
    A.label("L_T_G2")
    for t in range(4):
        A(f"  buffer_load_dwordx4 v[{128+4*t}:{131+4*t}], v12, s[52:55], s82 offen offset:{1024*t} sc1")
    A("  s_add_u32 s15, s15, 1")
    A("  s_waitcnt vmcnt(0)")
    for t in range(4):
        A(f"  v_bitop3_b32 v{40+2*t}, v{128+4*t}, v{129+4*t}, v11 bitop3:0x7e")
        A(f"  v_bitop3_b32 v{41+2*t}, v{130+4*t}, v{131+4*t}, v11 bitop3:0x7e")
    A("  v_or3_b32 v40, v40, v41, v42")
    A("  v_or3_b32 v43, v43, v44, v45")
    A("  v_or3_b32 v40, v40, v46, v47")
    A("  v_or_b32 v40, v40, v43")
    A("  v_and_b32 v40, s12, v40")
    A("  v_cmp_ne_u32 vcc, 0, v40")
    A("  s_cbranch_vccz L_T_G2D")
    A("  s_sleep 1")
    A(f"  s_cmp_lt_u32 s15, {SPIN_MAX}")
    A("  s_cbranch_scc1 L_T_G2")
    A("  v_mov_b32 v40, 4")
    A("  buffer_store_dword v40, v7, s[64:67], 0 offen offset:12")
    A.label("L_T_G2D")
    for k in range(16): A(f"  v_and_b32 v{128+k}, s13, v{128+k}")
    for j in range(4): A(f"  v_add_f32 v{40+j}, v{128+j}, v{132+j}")
    for j in range(4): A(f"  v_add_f32 v{44+j}, v{136+j}, v{140+j}")
    for j in range(4): A(f"  v_add_f32 v{40+j}, v{40+j}, v{44+j}")
    for rot in (1, 2, 4, 8):
        for j in range(4): A(f"  v_add_f32_dpp v{40+j}, v{40+j}, v{40+j} row_ror:{rot} row_mask:0xf bank_mask:0xf")
    for sw in ("v_permlane16_swap_b32", "v_permlane32_swap_b32"):
        for j in range(4): A(f"  v_mov_b32 v{44+j}, v{40+j}")
        for j in range(4): A(f"  {sw} v{40+j}, v{44+j}")
        for j in range(4): A(f"  v_add_f32 v{40+j}, v{40+j}, v{44+j}")
    A("  v_cvt_pk_bf16_f32 v44, v40, v41")
    A("  v_cvt_pk_bf16_f32 v45, v42, v43")
    A("  s_mov_b64 exec, 1")
    A("  buffer_store_dwordx2 v[44:45], v7, s[60:63], s85 offen")
    A("  s_or_b32 s10, s2, s70")
    A("  s_cmp_lg_u32 s10, 0")
    A("  s_cbranch_scc1 L_T_NOEP")
    A("  buffer_store_dword v8, v7, s[52:55], 0 offen sc1")
    A.label("L_T_NOEP")
    A("  s_mov_b64 exec, -1")
    if diag:
        A("  s_cmp_eq_u32 s70, 0")
        A("  s_cbranch_scc1 L_DG4")
        stamp(8)
        A.label("L_DG4")
    A.label("L_T_NEXT")
    A("  s_cmp_eq_u32 s70, 0")
    A("  s_mov_b32 s70, 0")
    A("  s_cbranch_scc0 L_T_PHASE")
    stamp(7)
    A("  s_endpgm")

    QF = 16; OA = 32; SS = 64; PF = 72; VT = 76
    KB = (96, 160); VB = (128, 192)
    A.label("L_S")
    A("  s_sub_u32 s3, s3, 4")
    A("  v_subrev_u32 v2, 256, v0")
    A("  v_lshlrev_b32 v2, 4, v2")
    for i in range(4): A(f"  v_mov_b32 v{8+i}, 0")
    A("  ds_write_b128 v2, v[8:11]")
    A("  v_lshrrev_b32 v6, 4, v1")
    A("  v_and_b32 v7, 15, v1")
    A("  v_and_b32 v2, 3, v7")
    A("  v_lshlrev_b32 v2, 2, v2")
    A("  v_lshrrev_b32 v3, 2, v7")
    A("  v_add_u32 v2, v2, v3")
    A("  v_lshlrev_b32 v2, 8, v2")
    A("  v_lshl_add_u32 v2, v6, 4, v2")
    A("  v_add_u32 v3, 4096, v2")
    A("  v_lshlrev_b32 v4, 4, v1")
    A("  v_add_u32 v5, 4096, v4")
    A("  v_and_b32 v8, 7, v7")
    A("  v_lshlrev_b32 v12, 8, v8")
    A("  v_lshl_add_u32 v12, v6, 4, v12")
    A("  v_mul_u32_u24 v13, 528, v8")
    A("  v_lshl_add_u32 v13, v6, 7, v13")
    A("  v_lshlrev_b32 v14, 3, v8")
    A("  s_lshl_b32 s8, s6, 24")
    A("  s_bfe_u32 s9, s2, 0x30003")
    A("  s_lshl_b32 s9, s9, 8")
    A("  s_and_b32 s10, s2, 7")
    A("  s_lshl_b32 s10, s10, 2")
    A("  s_add_u32 s9, s9, s10")
    A("  s_add_u32 s9, s9, s3")
    A("  s_lshl_b32 s9, s9, 13")
    A("  s_add_u32 s9, s9, s8")
    A("  s_lshl_b32 s10, s7, 1")
    A("  s_add_u32 s10, s10, s3")
    A("  s_lshl_b32 s10, s10, 13")
    A(f"  s_add_u32 s10, s10, {61440*256}")
    A("  s_add_u32 s10, s10, s8")
    A(f"  s_mov_b32 s90, {LOG2E}")
    A(f"  s_mov_b32 s91, {SCALE}")
    A("  s_mov_b32 s14, 0xffff0000")
    A("  s_cmp_lt_u32 s3, 2")
    A("  s_waitcnt lgkmcnt(0)")
    A("  s_cselect_b32 s56, s28, s18")
    A("  s_cselect_b32 s57, s29, s19")
    A(f"  s_mov_b32 s58, {64<<20}\n  s_mov_b32 s59, 0x00020000")
    A("  s_cselect_b32 s60, s30, s20")
    A("  s_cselect_b32 s61, s31, s21")
    A(f"  s_mov_b32 s62, {64<<20}\n  s_mov_b32 s63, 0x00020000")
    srd(44, 18, 19, 64 << 20)
    srd(48, 20, 21, 64 << 20)
    A("  s_cselect_b32 s10, s10, s9")
    A("  s_cselect_b32 s11, 0, 262144")
    A("  s_cselect_b32 s12, 9, 8")
    A("  s_cselect_b32 s13, 8, 7")
    A("  s_cselect_b32 s15, 1, 0")
    A("  s_add_u32 s9, s9, s11")
    A("  s_barrier")

    def issueK(b, srd_, so):
        for t in range(2):
            for j in range(4):
                r = KB[b] + 16 * t + 4 * j
                A(f"  buffer_load_dwordx4 v[{r}:{r+3}], v{2+t}, s[{srd_}:{srd_+3}], {so} offen offset:{64*j} nt")
    def issueV(b, srd_, so):
        for e in range(8):
            r = VB[b] + 4 * e
            A(f"  buffer_load_dwordx4 v[{r}:{r+3}], v{4+(e>>2)}, s[{srd_}:{srd_+3}], {so} offen offset:{1024*(e&3)} nt")
    issueK(0, 56, "s10"); issueV(0, 60, "s10")
    issueK(1, 44, "s9"); issueV(1, 48, "s9")
    A("  s_add_u32 s9, s9, 262144")
    A("  s_sub_u32 s13, s13, 1")
    A("  s_cmp_eq_u32 s15, 1")
    A("  s_cselect_b32 s16, 4, 0")
    A("  s_add_u32 s16, s16, s3")
    A("  s_lshl_b32 s18, s15, 2")
    A("  s_lshl_b32 s19, s15, 11")
    A(f"  s_add_u32 s19, s19, {L_QF}")
    A("  s_barrier")
    A("  s_barrier")
    stamp(3)
    A.label("L_S_INIT")
    A("  v_add_u32 v15, s19, v12")
    for j in range(4):
        A(f"  ds_read_b128 v[{QF+4*j}:{QF+4*j+3}], v15 offset:{64*j}")
    A("  v_mov_b32 v10, 0xff7fffff")
    A("  v_mov_b32 v11, 0")
    for i in range(32): A(f"  v_mov_b32 v{OA+i}, 0")
    A("  s_waitcnt lgkmcnt(0)")
    A("  s_cmp_eq_u32 s12, 8")
    A("  s_cselect_b32 s20, 1, 0")
    A("  s_cmp_lt_u32 s3, 2")
    A("  s_cselect_b32 s21, 1, 0")
    A("  s_and_b32 s20, s20, s21")
    A("  s_cbranch_scc1 L_S_BODY1")

    def body(b):
        K = KB[b]; V = VB[b]
        A("  s_waitcnt vmcnt(24)")
        for j in range(4):
            for t in range(2):
                c = "0" if j == 0 else f"v[{SS+4*t}:{SS+4*t+3}]"
                A(f"  v_mfma_f32_16x16x32_bf16 v[{SS+4*t}:{SS+4*t+3}], v[{K+16*t+4*j}:{K+16*t+4*j+3}], v[{QF+4*j}:{QF+4*j+3}], {c}")
        A("  s_cmp_eq_u32 s13, 0")
        A(f"  s_cselect_b32 s46, 0, {64<<20}")
        A(f"  s_cselect_b32 s50, 0, {64<<20}")
        A("  s_cselect_b32 s22, s8, s9")
        issueK(b, 44, "s22")
        for k in range(4): A(f"  v_cvt_pk_bf16_f32 v{PF+k}, v{SS+2*k}, v{SS+2*k+1}")
        for k in range(4):
            A(f"  v_lshlrev_b32 v{SS+2*k}, 16, v{PF+k}")
            A(f"  v_and_b32 v{SS+2*k+1}, s14, v{PF+k}")
        for k in range(8): A(f"  v_mul_f32 v{SS+k}, s91, v{SS+k}")
        for k in range(4): A(f"  v_cvt_pk_bf16_f32 v{PF+k}, v{SS+2*k}, v{SS+2*k+1}")
        for k in range(4):
            A(f"  v_lshlrev_b32 v{SS+2*k}, 16, v{PF+k}")
            A(f"  v_and_b32 v{SS+2*k+1}, s14, v{PF+k}")
        A(f"  v_max3_f32 v8, v{SS}, v{SS+1}, v{SS+2}")
        A(f"  v_max3_f32 v9, v{SS+3}, v{SS+4}, v{SS+5}")
        A(f"  v_max3_f32 v8, v8, v{SS+6}, v{SS+7}")
        A("  v_max_f32 v8, v8, v9")
        for sw in ("v_permlane16_swap_b32", "v_permlane32_swap_b32"):
            A("  v_mov_b32 v9, v8")
            A(f"  {sw} v8, v9")
            A("  v_max_f32 v8, v8, v9")
        A("  v_mul_f32 v8, s90, v8")
        A("  v_max_f32 v8, v8, v10")
        A("  v_sub_f32 v9, v10, v8")
        A("  v_exp_f32 v9, v9")
        A("  v_mov_b32 v10, v8")
        for k in range(8): A(f"  v_fma_f32 v{SS+k}, v{SS+k}, s90, -v8")
        for k in range(8): A(f"  v_exp_f32 v{SS+k}, v{SS+k}")
        A("  v_mul_f32 v11, v11, v9")
        for i in range(32): A(f"  v_mul_f32 v{OA+i}, v{OA+i}, v9")
        for k in range(4): A(f"  v_cvt_pk_bf16_f32 v{PF+k}, v{SS+2*k}, v{SS+2*k+1}")
        for k in range(8): A(f"  v_add_f32 v11, v11, v{SS+k}")
        A("  s_waitcnt vmcnt(24)")
        def perms(q):
            st = VT + 8 * (q & 1)
            for h in range(2):
                for p in range(4):
                    A(f"  v_perm_b32 v{st+4*h+p}, v{V+4*(2*p+1)+q}, v{V+4*(2*p)+q}, s{4+h}")
        def mf(q):
            st = VT + 8 * (q & 1)
            for h in range(2):
                i = 2 * q + h
                A(f"  v_mfma_f32_16x16x32_bf16 v[{OA+4*i}:{OA+4*i+3}], v[{st+4*h}:{st+4*h+3}], v[{PF}:{PF+3}], v[{OA+4*i}:{OA+4*i+3}]")
        perms(0); perms(1); mf(0); perms(2); mf(1); perms(3); mf(2)
        issueV(b, 48, "s22")
        mf(3)
        A("  s_cmp_eq_u32 s13, 0")
        A("  s_cselect_b32 s22, 0, 1")
        A("  s_sub_u32 s13, s13, s22")
        A("  s_add_u32 s9, s9, 262144")
        A("  s_sub_u32 s12, s12, 1")
        A("  s_cmp_eq_u32 s12, 0")
        A("  s_cbranch_scc1 L_S_FLUSH")

    A.label("L_S_BODY0")
    body(0)
    A("  s_cmp_eq_u32 s15, 1")
    A("  s_cbranch_scc1 L_S_FLUSH")
    A.label("L_S_BODY1")
    body(1)
    A("  s_branch L_S_BODY0")

    A.label("L_S_FLUSH")
    stamp(4)
    for sw in ("v_permlane16_swap_b32", "v_permlane32_swap_b32"):
        A("  v_mov_b32 v9, v11")
        A(f"  {sw} v11, v9")
        A("  v_add_f32 v11, v11, v9")
    A(f"  s_mul_i32 s22, s16, {SPS}")
    A(f"  s_add_u32 s22, s22, {L_SP}")
    A("  v_add_u32 v8, s22, v13")
    A("  s_lshl_b32 s22, s16, 6")
    A(f"  s_add_u32 s22, s22, {L_ML}")
    A("  v_add_u32 v9, s22, v14")
    A("  s_mov_b32 s22, 0x00ff00ff\n  s_mov_b32 s23, 0x00ff00ff")
    A("  s_mov_b64 exec, s[22:23]")
    for i in range(8):
        A(f"  ds_write_b128 v8, v[{OA+4*i}:{OA+4*i+3}] offset:{16*i}")
    A("  ds_write_b64 v9, v[10:11]")
    A("  v_mov_b32 v8, s18")
    A("  v_mov_b32 v9, 1")
    A("  s_mov_b64 exec, 1")
    A("  s_waitcnt lgkmcnt(0)")
    A(f"  ds_add_u32 v8, v9 offset:{L_CNT}")
    A("  s_mov_b64 exec, -1")
    A("  s_cmp_eq_u32 s12, 0")
    A("  s_cbranch_scc1 L_S_DONE")
    A("  s_mov_b32 s15, 0")
    A("  s_mov_b32 s16, s3")
    A("  s_mov_b32 s18, 0")
    A(f"  s_mov_b32 s19, {L_QF}")
    A("  s_branch L_S_INIT")
    A.label("L_S_DONE")
    stamp(5)
    A("  s_waitcnt lgkmcnt(0)")
    A.label("L_END")
    A("  s_endpgm")
    A('.section .rodata,"a"\n.p2align 6')
    A(f".amdhsa_kernel {NAME}_kernel")
    A(f"  .amdhsa_next_free_vgpr 256\n  .amdhsa_next_free_sgpr 102\n  .amdhsa_accum_offset 256")
    A("  .amdhsa_group_segment_fixed_size 0\n  .amdhsa_kernarg_size 104\n  .amdhsa_user_sgpr_count 2\n  .amdhsa_user_sgpr_kernarg_segment_ptr 1\n  .amdhsa_system_sgpr_workgroup_id_x 1")
    A(".end_amdhsa_kernel")
    return A.finalize()

if __name__ == "__main__":
    import sys
    out = sys.argv[1] if len(sys.argv) > 1 else f"cdna_kernels/{NAME}.s"
    diag = len(sys.argv) > 2 and sys.argv[2] == 'diag'
    open(out, "w").write(gen(diag))
    print("wrote", out)
```
